```python
import torch

def _softmax(x, axis=-1):
    return torch.softmax(x, dim=axis)

def _gelu(x):
    return torch.nn.functional.gelu(x, approximate='tanh')

def _silu(x):
    return torch.nn.functional.silu(x)

def _sigmoid(x):
    return torch.sigmoid(x)

def _layernorm(x, axis=-1, eps=1e-05):
    m = x.mean(dim=axis, keepdim=True)
    v = x.var(dim=axis, keepdim=True, unbiased=False)
    return (x - m) / torch.sqrt(v + eps)

def _scatter_add(tgt, idx, src, axis=0):
    return tgt.clone().index_add_(axis, idx, src)

def _segment_sum(src, seg, n):
    out = torch.zeros((n,) + src.shape[1:], dtype=src.dtype)
    return out.index_add_(0, seg, src)

def _pad(x, pw):
    flat = tuple((v for pair in reversed(pw) for v in pair))
    return torch.nn.functional.pad(x, flat)
kernel_name = 'parallel_sum__compressed_kv_cla__mixer_gmlp__prompt'

def setup_inputs():

    _w = lambda a: (lambda t: t.to(torch.bfloat16) if t.is_floating_point() else t)(torch.as_tensor(a))

    def _A_setup():
        B, H, Sq, Sk, D, M = (1, 32, 2048, 2048, 128, 640)
        Dc = 4 * D
        return {'x': _w((lambda *s: torch.randn(*s, dtype=torch.bfloat16) * 0.05)(B, Sq, M)), 'c_kv': _w((lambda *s: torch.randn(*s, dtype=torch.bfloat16) * 1.6)(B, Sk, Dc)), 'w_q': _w((lambda *s: torch.randn(*s, dtype=torch.bfloat16) * 1.6)(M, H, D) * M ** (-0.5)), 'w_uk': _w((lambda *s: torch.randn(*s, dtype=torch.bfloat16) * 1.6)(Dc, H, D) * Dc ** (-0.5)), 'w_uv': _w((lambda *s: torch.randn(*s, dtype=torch.bfloat16) * 1.6)(Dc, H, D) * Dc ** (-0.5)), 'w_o': _w((lambda *s: torch.randn(*s, dtype=torch.bfloat16) * 1.6)(H, D, M) * (H * D) ** (-0.5))}
    _A_in = _A_setup()

    def _B_setup():
        B, S, D, F = (1, 2048, 640, 1728)
        Fh = F // 2
        return {'x': _w((lambda *s: torch.randn(*s, dtype=torch.bfloat16) * 0.05)(B, S, D)), 'w_in': _w((lambda *s: torch.randn(*s, dtype=torch.bfloat16) * 0.4)(D, 2 * Fh)), 'w_sp': _w(0.01 * (lambda *s: torch.randn(*s, dtype=torch.bfloat16) * 0.4)(S, S)), 'b_sp': _w(1.0 + 0.01 * (lambda *s: torch.randn(*s, dtype=torch.bfloat16) * 0.05)(S)), 'w_out': _w((lambda *s: torch.randn(*s, dtype=torch.bfloat16) * 0.05)(Fh, D))}
    _B_in = _B_setup()
    return {'A_x': _A_in['x'], 'A_c_kv': _A_in['c_kv'], 'A_w_q': _A_in['w_q'], 'A_w_uk': _A_in['w_uk'], 'A_w_uv': _A_in['w_uv'], 'A_w_o': _A_in['w_o'], 'B_x': _B_in['x'], 'B_w_in': _B_in['w_in'], 'B_w_sp': _B_in['w_sp'], 'B_b_sp': _B_in['b_sp'], 'B_w_out': _B_in['w_out']}

def reference(A_x, A_c_kv, A_w_q, A_w_uk, A_w_uv, A_w_o, B_x, B_w_in, B_w_sp, B_b_sp, B_w_out):

    def _A_ref(x, c_kv, w_q, w_uk, w_uv, w_o):
        B, Sq, M = (x.shape[0], x.shape[1], x.shape[2])
        Sk = c_kv.shape[1]
        H, D = (w_q.shape[1], w_q.shape[2])
        q = torch.einsum('bqm,mhd->bhqd', x, w_q)
        k = torch.einsum('bkc,chd->bhkd', c_kv, w_uk)
        v = torch.einsum('bkc,chd->bhkd', c_kv, w_uv)
        scores = torch.einsum('bhqd,bhkd->bhqk', q, k) * D ** (-0.5)
        off = Sk - Sq
        qi = torch.arange(Sq)[:, None]
        kj = torch.arange(Sk)[None, :]
        cmask = kj <= qi + off
        scores = torch.where(cmask[None, None], scores, -1000000000.0)
        p = _softmax(scores, axis=-1)
        ctx = torch.einsum('bhqk,bhkd->bhqd', p, v)
        return torch.einsum('bhqd,hdm->bqm', ctx, w_o)

    def _B_ref(x, w_in, w_sp, b_sp, w_out):
        B, S, D = x.shape
        F = w_in.shape[-1]
        Fh = F // 2
        z = _gelu(torch.einsum('bsd,df->bsf', x, w_in))
        z1 = z[..., :Fh].clone()
        z2 = _layernorm(z[..., Fh:], axis=-1)
        g = torch.einsum('ts,bsf->btf', w_sp, z2) + b_sp[None, :, None]
        return torch.einsum('bsf,fd->bsd', z1 * g, w_out)
    x = A_x
    xn = _layernorm(x, axis=-1)
    return x + _A_ref(xn, A_c_kv, A_w_q, A_w_uk, A_w_uv, A_w_o) + _B_ref(xn, B_w_in, B_w_sp, B_b_sp, B_w_out)
```

```python
import re

REG_RE = re.compile(r'\b([vas])(\d+)\b|\b([vas])\[(\d+):(\d+)\]|\b(vcc|exec|m0|scc)\b')

def regs_of(op):
    out = []
    for m in REG_RE.finditer(op):
        if m.group(1):
            out.append(m.group(1) + m.group(2))
        elif m.group(3):
            out += [m.group(3) + str(i) for i in range(int(m.group(4)), int(m.group(5)) + 1)]
        else:
            out.append(m.group(6))
    return out

TRANS = ('v_exp_f32', 'v_log_f32', 'v_rcp_f32', 'v_rsq_f32', 'v_sqrt_f32', 'v_sin_f32', 'v_cos_f32')

class Ins:
    __slots__ = ('text', 'op', 'kind', 'rd', 'wr', 'srcc', 'srcab', 'passes', 'target', 'label', 'nop', 'vm', 'lgkm',
                 'wide', 'dpp', 'data', 'sread')
    def __init__(self, text):
        self.text = text
        code, _, cmt = text.partition(';')
        code = code.strip()
        self.rd = set(); self.wr = set(); self.srcc = set(); self.srcab = set(); self.passes = 0
        self.target = None; self.label = None; self.nop = 1; self.vm = None; self.lgkm = None
        self.wide = False; self.dpp = False; self.data = set(); self.sread = set()
        if not code or code.startswith('.'):
            self.op = ''; self.kind = 'none'; self.nop = 0
            return
        if code.endswith(':'):
            self.op = ''; self.kind = 'label'; self.label = code[:-1]; self.nop = 0
            return
        parts = code.split(None, 1)
        op = parts[0]; rest = parts[1] if len(parts) > 1 else ''
        self.op = op
        ops = [o.strip() for o in re.split(r',(?![^\[]*\])', rest)] if rest else []
        R = lambda i: set(regs_of(ops[i])) if i < len(ops) else set()
        allr = lambda frm: set().union(*[set(regs_of(o)) for o in ops[frm:]]) if len(ops) > frm else set()
        if op.startswith('v_mfma'):
            self.kind = 'mfma'
            self.wr = R(0); self.srcab = R(1) | R(2); self.srcc = R(3); self.rd = self.srcab | self.srcc
            self.passes = 8 if '32x32x16' in op else 4 if '16x16x32' in op else None
            assert self.passes
        elif op.startswith('ds_read') or op.startswith('ds_bpermute') or op.startswith('ds_swizzle'):
            self.kind = 'ds_read'; self.wr = R(0); self.rd = allr(1)
        elif op.startswith('ds_write'):
            self.kind = 'ds_write'; self.rd = allr(0)
        elif op.startswith('buffer_load'):
            if re.search(r'\blds\b', rest):
                self.kind = 'dma'; self.rd = allr(0) | {'m0'}
            else:
                self.kind = 'vload'; self.wr = R(0); self.rd = allr(1)
        elif op.startswith('buffer_store'):
            self.kind = 'vstore'; self.rd = allr(0); self.data = R(0)
            self.wide = ('x3' in op or 'x4' in op)
        elif op.startswith('buffer_atomic'):
            self.kind = 'vstore'; self.rd = allr(0)
            if re.search(r'\bsc0\b', rest):
                self.kind = 'vload'; self.wr = R(0)
        elif op.startswith('buffer_inv') or op.startswith('buffer_wbl2'):
            self.kind = 'vstore'
        elif op.startswith('s_load') or op.startswith('s_memtime') or op.startswith('s_memrealtime'):
            self.kind = 'smem'; self.wr = R(0); self.rd = allr(1)
        elif op == 's_waitcnt':
            self.kind = 'wait'
            m = re.search(r'vmcnt\((\d+)\)', rest); self.vm = int(m.group(1)) if m else None
            m = re.search(r'lgkmcnt\((\d+)\)', rest); self.lgkm = int(m.group(1)) if m else None
        elif op == 's_nop':
            self.kind = 'nop'; self.nop = int(rest, 0) + 1
        elif op == 's_barrier':
            self.kind = 'barrier'
        elif op == 's_endpgm':
            self.kind = 'end'
        elif op == 's_branch':
            self.kind = 'branch'; self.target = rest.strip()
        elif op.startswith('s_cbranch'):
            self.kind = 'cbranch'; self.target = rest.strip()
            self.rd = {'scc'} if 'scc' in op else {'vcc'} if 'vcc' in op else {'exec'}
        elif op in ('s_setprio', 's_sleep'):
            self.kind = 'salu'
        elif op.startswith('s_cmp') or op.startswith('s_bitcmp'):
            self.kind = 'salu'; self.rd = allr(0); self.wr = {'scc'}
        elif op.startswith('s_'):
            self.kind = 'salu'; self.wr = R(0); self.rd = allr(1)
            if 'saveexec' in op:
                self.wr |= {'exec', 'scc'}; self.rd |= {'exec'}
            if not (op.startswith('s_mov') or op.startswith('s_cselect') or op.startswith('s_mul') or op.startswith('s_getreg')):
                self.wr |= {'scc'}
            if op.startswith('s_cselect') or op.startswith('s_addc') or op.startswith('s_subb'):
                self.rd |= {'scc'}
            if op.startswith('s_addk') or op.startswith('s_mulk'):
                self.rd |= R(0)
        elif op.startswith('v_'):
            base = op.replace('_e32', '').replace('_e64', '').replace('_dpp', '')
            self.kind = 'trans' if base in TRANS else 'valu'
            self.dpp = op.endswith('_dpp') or 'row_' in rest or 'quad_perm' in rest
            self.wr = R(0); self.rd = allr(1)
            if base.startswith('v_permlane') and 'swap' in base:
                self.wr = R(0) | R(1); self.rd = R(0) | R(1)
            if base.startswith('v_fmac') or base.startswith('v_dot2c') or self.dpp:
                self.rd |= R(0)
            if '_co_' in base:
                self.wr |= R(1); self.rd = allr(2)
            self.sread = {r for r in self.rd if r[0] == 's' or r == 'vcc'}
        else:
            raise ValueError('unknown instruction: ' + text)
        for m in re.finditer(r'\b([RW]):([\w.,]+)', cmt):
            names = {'@' + n for n in m.group(2).split(',') if n}
            if m.group(1) == 'R': self.rd |= names
            else: self.wr |= names

    @property
    def is_valu(self): return self.kind in ('valu', 'trans')
    @property
    def is_vmem(self): return self.kind in ('vload', 'vstore', 'dma')
    @property
    def is_ds(self): return self.kind in ('ds_read', 'ds_write')

def need_ws(p, c):
    n = 0
    if p.is_valu:
        w = p.wr
        vw = {r for r in w if r[0] in 'va' and r != 'vcc'}
        sw = {r for r in w if r[0] == 's' and r != 'scc' or r == 'vcc'}
        if c.kind == 'mfma' and vw & c.rd: n = max(n, 2)
        if c.is_valu:
            if p.kind == 'trans' and c.kind != 'trans' and vw & c.rd: n = max(n, 1)
            if p.kind == 'trans' and c.kind == 'trans' and vw & c.rd: n = max(n, 1)
            if sw & c.sread: n = max(n, 4 if ('readlane' in c.op or 'writelane' in c.op) else 2)
            if ('readfirstlane' in c.op or 'readlane' in c.op) and vw & c.rd: n = max(n, 1)
            if c.dpp and vw & c.rd: n = max(n, 2)
            if 'permlane' in c.op and vw & c.rd: n = max(n, 2)
        if c.is_vmem and sw & c.rd: n = max(n, 5)
        if c.kind in ('salu', 'cbranch') and sw & c.rd: n = max(n, 1)
        if 'exec' in w: n = max(n, 5)
    if p.kind == 'mfma':
        big = p.passes == 8
        if c.kind == 'mfma':
            if p.wr & c.srcab: n = max(n, 12 if big else 8)
            if p.wr & c.srcc and not (p.wr == c.srcc and p.passes == c.passes): n = max(n, 10 if big else 6)
            if p.wr & c.wr and not (p.wr == c.srcc and p.passes == c.passes) : n = max(n, 10 if big else 6)
        elif c.is_valu or c.is_vmem or c.is_ds:
            if p.wr & (c.rd | c.wr): n = max(n, 12 if big else 8)
            if c.is_valu and p.srcc & c.wr: n = max(n, 7 if big else 3)
            if (c.kind in ('vload', 'ds_read')) and p.srcc & c.wr: n = max(n, 7 if big else 3)
    if p.kind == 'salu' and 'm0' in p.wr and c.kind == 'dma': n = max(n, 1)
    if p.kind == 'vstore' and p.wide and p.data & c.wr: n = max(n, 2)
    return n

WIN = 14

class State:
    def __init__(self):
        self.vm = []
        self.lg = []
        self.win = []
    def copy(self):
        s = State(); s.vm = list(self.vm); s.lg = list(self.lg); s.win = list(self.win); return s
    def key(self):
        return (tuple(self.vm), tuple(self.lg), tuple((id(i), a) for i, a in self.win))
    def needs(self, ins):
        touched = ins.rd | ins.wr
        vm = None; lg = None
        for k, d in enumerate(self.vm):
            t = ins.rd if ins.kind in ('vload', 'dma') else touched
            if d & t: vm = len(self.vm) - 1 - k
        for k, (d, sm) in enumerate(self.lg):
            t = ins.rd if (ins.kind == 'ds_read' and not sm) else touched
            if d & t:
                lg = len(self.lg) - 1 - k
        if lg is not None and any(sm for _, sm in self.lg): lg = 0
        nops = 0
        for p, age in self.win:
            n = need_ws(p, ins)
            if n > age: nops = max(nops, n - age)
        return vm, lg, nops
    def step(self, ins):
        if ins.kind in ('none', 'label'): return
        if ins.kind == 'wait':
            if ins.vm is not None and len(self.vm) > ins.vm:
                self.vm = self.vm[len(self.vm) - ins.vm:] if ins.vm else []
            if ins.lgkm is not None:
                if any(sm for _, sm in self.lg):
                    if ins.lgkm == 0: self.lg = []
                elif len(self.lg) > ins.lgkm:
                    self.lg = self.lg[len(self.lg) - ins.lgkm:] if ins.lgkm else []
        elif ins.is_vmem:
            self.vm.append(frozenset(ins.wr))
            while self.vm and not self.vm[0]: self.vm.pop(0)
        elif ins.is_ds:
            self.lg.append((frozenset(ins.wr), False))
            while self.lg and not self.lg[0][0]: self.lg.pop(0)
        elif ins.kind == 'smem':
            self.lg.append((frozenset(ins.wr), True))
        self.win = [(p, a + ins.nop) for p, a in self.win if a + ins.nop < WIN]
        if ins.kind in ('valu', 'trans', 'mfma', 'vstore') or (ins.kind == 'salu' and 'm0' in ins.wr):
            self.win.insert(0, (ins, 0))

def P(lines):
    out = []
    for l in lines:
        if isinstance(l, Ins): out.append(l)
        elif isinstance(l, (list, tuple)): out += P(l)
        else:
            for t in l.split('\n'):
                if t.strip(): out.append(Ins(t.strip()))
    return out

def auto(lines, st=None, look=0, minage=6):
    ins = P(lines)
    st = st.copy() if st else State()
    out = []
    issue_m = {}
    mcount = 0
    lg_issue = [(-99)] * len(st.lg)
    for idx, i in enumerate(ins):
        if i.kind in ('none', 'label'):
            out.append(i); continue
        vm, lg, nops = st.needs(i)
        if lg is not None and look and not any(sm for _, sm in st.lg):
            seen = 0
            for j in ins[idx + 1:]:
                if j.kind in ('label', 'branch', 'cbranch', 'barrier'): break
                if j.kind == 'mfma':
                    seen += 1
                    if seen > look: break
                    for k, (d, sm) in enumerate(st.lg):
                        if d & j.rd and mcount - lg_issue[len(lg_issue) - len(st.lg) + k] >= minage:
                            lg = min(lg, len(st.lg) - 1 - k)
        if vm is not None or lg is not None:
            t = 's_waitcnt'
            if vm is not None: t += ' vmcnt(%d)' % min(vm, 63)
            if lg is not None: t += ' lgkmcnt(%d)' % min(lg, 15)
            w = Ins(t); out.append(w); st.step(w)
            vm, lg, nops = st.needs(i)
            assert vm is None and lg is None, (i.text, vm, lg)
        while nops > 0:
            k = min(nops, 16)
            w = Ins('s_nop %d' % (k - 1)); out.append(w); st.step(w); nops -= k
        out.append(i); st.step(i)
        if i.is_ds or i.kind == 'smem': lg_issue.append(mcount)
        if i.kind == 'mfma': mcount += 1
    return out, st

def check(ins, entry_labels, maxstates=400000):
    lab = {i.label: k for k, i in enumerate(ins) if i.kind == 'label'}
    errs = {}
    for e in entry_labels:
        seen = set()
        work = [(lab[e], State())]
        n = 0
        while work:
            pc, st = work.pop()
            while True:
                i = ins[pc]
                if i.kind == 'label':
                    k = (pc, st.key())
                    if k in seen: break
                    seen.add(k); n += 1
                    if n > maxstates: raise RuntimeError('too many states')
                elif i.kind != 'none':
                    vm, lg, nops = st.needs(i)
                    if vm is not None or lg is not None or nops:
                        errs.setdefault(pc, (i.text, vm, lg, nops))
                    st.step(i)
                    if len(st.vm) > 63: errs.setdefault(pc, (i.text, 'vm overflow', len(st.vm), 0))
                    if i.kind == 'end': break
                    if i.kind == 'branch':
                        pc = lab[i.target]; continue
                    if i.kind == 'cbranch':
                        work.append((lab[i.target], st.copy()))
                pc += 1
    return errs

def weave(mf, fill):
    n = len(mf)
    gaps = [[] for _ in range(n + 1)]
    for g, t in fill:
        g = max(-1, min(g, n - 1))
        gaps[g + 1].append(t)
    out = []
    out += gaps[0]
    for k in range(n):
        out.append(mf[k]); out += gaps[k + 1]
    return out

def vr(b, n=1, k='v'):
    return '%s%d' % (k, b) if n == 1 else '%s[%d:%d]' % (k, b, b + n - 1)
def ar(b, n=1): return vr(b, n, 'a')
def sr(b, n=1): return vr(b, n, 's')

def text_of(ins):
    out = []
    for i in ins:
        out.append(i.text if i.kind in ('label', 'none') else '    ' + i.text)
    return '\n'.join(out) + '\n'
```

```python
import sys, importlib
sys.path.insert(0, 'gen')
from fw import *
HEAD = open('parallel_sum__compressed_kv_cla__mixer_gmlp__prompt.s.ref').read().split('; Override launch')[0]
def build(mods, out):
    launches = []; code = []; kds = []
    for m in mods:
        mod = importlib.import_module(m)
        ins, k, (name, grid, block, lds) = mod.gen()
        errs = check(ins, [name])
        for pc, e in sorted(errs.items())[:30]:
            print('CHECK', m, name, pc, e)
        assert not errs, 'checker failed'
        launches.append('; @launch kernel=%s grid=(%d,1,1) block=(%d,1,1) lds=%d' % (name, grid, block, lds))
        code.append('.globl %s\n.p2align 8\n.type %s,@function\n' % (name, name) + text_of(ins))
        kds.append('.p2align 6\n' + k)
        nm = sum(1 for i in ins if i.kind == 'mfma'); nn = sum(1 for i in ins if i.kind == 'nop'); nw = sum(1 for i in ins if i.kind == 'wait')
        print(m, 'instrs', sum(1 for i in ins if i.kind not in ('none', 'label')), 'mfma', nm, 'nops', nn, 'waits', nw)
    txt = HEAD + '\n'.join(launches) + '\n.amdgcn_target "amdgcn-amd-amdhsa--gfx950"\n.text\n' + ''.join(code) + '.section .rodata,"a"\n' + ''.join(kds)
    open(out, 'w').write(txt)
if __name__ == '__main__':
    build(sys.argv[2:], sys.argv[1])
```

```python
import re

REG_RE = re.compile(r'\b([vas])(\d+)\b|\b([vas])\[(\d+):(\d+)\]|\b(vcc|exec|m0|scc)\b')

def regs_of(op):
    out = []
    for m in REG_RE.finditer(op):
        if m.group(1):
            out.append(m.group(1) + m.group(2))
        elif m.group(3):
            out += [m.group(3) + str(i) for i in range(int(m.group(4)), int(m.group(5)) + 1)]
        else:
            out.append(m.group(6))
    return out

TRANS = ('v_exp_f32', 'v_log_f32', 'v_rcp_f32', 'v_rsq_f32', 'v_sqrt_f32', 'v_sin_f32', 'v_cos_f32')

class Ins:
    __slots__ = ('text', 'op', 'kind', 'rd', 'wr', 'srcc', 'srcab', 'passes', 'target', 'label', 'nop', 'vm', 'lgkm',
                 'wide', 'dpp', 'data', 'sread')
    def __init__(self, text):
        self.text = text
        code, _, cmt = text.partition(';')
        code = code.strip()
        self.rd = set(); self.wr = set(); self.srcc = set(); self.srcab = set(); self.passes = 0
        self.target = None; self.label = None; self.nop = 1; self.vm = None; self.lgkm = None
        self.wide = False; self.dpp = False; self.data = set(); self.sread = set()
        if not code or code.startswith('.'):
            self.op = ''; self.kind = 'none'; self.nop = 0
            return
        if code.endswith(':'):
            self.op = ''; self.kind = 'label'; self.label = code[:-1]; self.nop = 0
            return
        parts = code.split(None, 1)
        op = parts[0]; rest = parts[1] if len(parts) > 1 else ''
        self.op = op
        ops = [o.strip() for o in re.split(r',(?![^\[]*\])', rest)] if rest else []
        R = lambda i: set(regs_of(ops[i])) if i < len(ops) else set()
        allr = lambda frm: set().union(*[set(regs_of(o)) for o in ops[frm:]]) if len(ops) > frm else set()
        if op.startswith('v_mfma'):
            self.kind = 'mfma'
            self.wr = R(0); self.srcab = R(1) | R(2); self.srcc = R(3); self.rd = self.srcab | self.srcc
            self.passes = 8 if '32x32x16' in op else 4 if '16x16x32' in op else None
            assert self.passes
        elif op.startswith('ds_read') or op.startswith('ds_bpermute') or op.startswith('ds_swizzle'):
            self.kind = 'ds_read'; self.wr = R(0); self.rd = allr(1)
        elif op.startswith('ds_write'):
            self.kind = 'ds_write'; self.rd = allr(0)
        elif op.startswith('buffer_load'):
            if re.search(r'\blds\b', rest):
                self.kind = 'dma'; self.rd = allr(0) | {'m0'}
            else:
                self.kind = 'vload'; self.wr = R(0); self.rd = allr(1)
        elif op.startswith('buffer_store'):
            self.kind = 'vstore'; self.rd = allr(0); self.data = R(0)
            self.wide = ('x3' in op or 'x4' in op)
        elif op.startswith('buffer_atomic'):
            self.kind = 'vstore'; self.rd = allr(0)
            if re.search(r'\bsc0\b', rest):
                self.kind = 'vload'; self.wr = R(0)
        elif op.startswith('buffer_inv') or op.startswith('buffer_wbl2'):
            self.kind = 'vstore'
        elif op.startswith('s_load') or op.startswith('s_memtime') or op.startswith('s_memrealtime'):
            self.kind = 'smem'; self.wr = R(0); self.rd = allr(1)
        elif op == 's_waitcnt':
            self.kind = 'wait'
            m = re.search(r'vmcnt\((\d+)\)', rest); self.vm = int(m.group(1)) if m else None
            m = re.search(r'lgkmcnt\((\d+)\)', rest); self.lgkm = int(m.group(1)) if m else None
        elif op == 's_nop':
            self.kind = 'nop'; self.nop = int(rest, 0) + 1
        elif op == 's_barrier':
            self.kind = 'barrier'
        elif op == 's_endpgm':
            self.kind = 'end'
        elif op == 's_branch':
            self.kind = 'branch'; self.target = rest.strip()
        elif op.startswith('s_cbranch'):
            self.kind = 'cbranch'; self.target = rest.strip()
            self.rd = {'scc'} if 'scc' in op else {'vcc'} if 'vcc' in op else {'exec'}
        elif op in ('s_setprio', 's_sleep'):
            self.kind = 'salu'
        elif op.startswith('s_cmp') or op.startswith('s_bitcmp'):
            self.kind = 'salu'; self.rd = allr(0); self.wr = {'scc'}
        elif op.startswith('s_'):
            self.kind = 'salu'; self.wr = R(0); self.rd = allr(1)
            if 'saveexec' in op:
                self.wr |= {'exec', 'scc'}; self.rd |= {'exec'}
            if not (op.startswith('s_mov') or op.startswith('s_cselect') or op.startswith('s_mul') or op.startswith('s_getreg') or op.startswith('s_getpc')):
                self.wr |= {'scc'}
            if op.startswith('s_cselect') or op.startswith('s_addc') or op.startswith('s_subb'):
                self.rd |= {'scc'}
            if op.startswith('s_addk') or op.startswith('s_mulk'):
                self.rd |= R(0)
        elif op.startswith('v_'):
            base = op.replace('_e32', '').replace('_e64', '').replace('_dpp', '')
            self.kind = 'trans' if base in TRANS else 'valu'
            self.dpp = op.endswith('_dpp') or 'row_' in rest or 'quad_perm' in rest
            self.wr = R(0); self.rd = allr(1)
            if base.startswith('v_permlane') and 'swap' in base:
                self.wr = R(0) | R(1); self.rd = R(0) | R(1)
            if base.startswith('v_fmac') or base.startswith('v_dot2c') or self.dpp:
                self.rd |= R(0)
            if '_co_' in base:
                self.wr |= R(1); self.rd = allr(2)
            self.sread = {r for r in self.rd if r[0] == 's' or r == 'vcc'}
        else:
            raise ValueError('unknown instruction: ' + text)
        for m in re.finditer(r'\b([RW]):([\w.,]+)', cmt):
            names = {'@' + n for n in m.group(2).split(',') if n}
            if m.group(1) == 'R': self.rd |= names
            else: self.wr |= names

    @property
    def is_valu(self): return self.kind in ('valu', 'trans')
    @property
    def is_vmem(self): return self.kind in ('vload', 'vstore', 'dma')
    @property
    def is_ds(self): return self.kind in ('ds_read', 'ds_write')

def need_ws(p, c):
    n = 0
    if p.is_valu:
        w = p.wr
        vw = {r for r in w if r[0] in 'va' and r != 'vcc'}
        sw = {r for r in w if r[0] == 's' and r != 'scc' or r == 'vcc'}
        if c.kind == 'mfma' and vw & c.rd: n = max(n, 2)
        if c.is_valu:
            if p.kind == 'trans' and c.kind != 'trans' and vw & c.rd: n = max(n, 1)
            if p.kind == 'trans' and c.kind == 'trans' and vw & c.rd: n = max(n, 1)
            if sw & c.sread: n = max(n, 4 if ('readlane' in c.op or 'writelane' in c.op) else 2)
            if ('readfirstlane' in c.op or 'readlane' in c.op) and vw & c.rd: n = max(n, 1)
            if c.dpp and vw & c.rd: n = max(n, 2)
            if 'permlane' in c.op and vw & c.rd: n = max(n, 2)
        if c.is_vmem and sw & c.rd: n = max(n, 5)
        if c.kind in ('salu', 'cbranch') and sw & c.rd: n = max(n, 1)
        if 'exec' in w: n = max(n, 5)
    if p.kind == 'mfma':
        big = p.passes == 8
        if c.kind == 'mfma':
            if p.wr & c.srcab: n = max(n, 12 if big else 8)
            if p.wr & c.srcc and not (p.wr == c.srcc and p.passes == c.passes): n = max(n, 10 if big else 6)
            if p.wr & c.wr and not (p.wr == c.srcc and p.passes == c.passes) : n = max(n, 10 if big else 6)
        elif c.is_valu or c.is_vmem or c.is_ds:
            if p.wr & (c.rd | c.wr): n = max(n, 12 if big else 8)
            if c.is_valu and p.srcc & c.wr: n = max(n, 7 if big else 3)
            if (c.kind in ('vload', 'ds_read')) and p.srcc & c.wr: n = max(n, 7 if big else 3)
    if p.kind == 'salu' and 'm0' in p.wr and c.kind == 'dma': n = max(n, 1)
    if p.kind == 'vstore' and p.wide and p.data & c.wr: n = max(n, 2)
    return n

WIN = 14

class State:
    def __init__(self):
        self.vm = []
        self.lg = []
        self.win = []
    def copy(self):
        s = State(); s.vm = list(self.vm); s.lg = list(self.lg); s.win = list(self.win); return s
    def key(self):
        return (tuple(self.vm), tuple(self.lg), tuple((id(i), a) for i, a in self.win))
    def needs(self, ins):
        touched = ins.rd | ins.wr
        vm = None; lg = None
        for k, d in enumerate(self.vm):
            t = ins.rd if ins.kind in ('vload', 'dma') else touched
            if d & t: vm = len(self.vm) - 1 - k
        for k, (d, sm) in enumerate(self.lg):
            t = ins.rd if (ins.kind == 'ds_read' and not sm) else touched
            if d & t:
                lg = len(self.lg) - 1 - k
        if lg is not None and any(sm for _, sm in self.lg): lg = 0
        nops = 0
        for p, age in self.win:
            n = need_ws(p, ins)
            if n > age: nops = max(nops, n - age)
        return vm, lg, nops
    def step(self, ins):
        if ins.kind in ('none', 'label'): return
        if ins.kind == 'wait':
            if ins.vm is not None and len(self.vm) > ins.vm:
                self.vm = self.vm[len(self.vm) - ins.vm:] if ins.vm else []
            if ins.lgkm is not None:
                if any(sm for _, sm in self.lg):
                    if ins.lgkm == 0: self.lg = []
                elif len(self.lg) > ins.lgkm:
                    self.lg = self.lg[len(self.lg) - ins.lgkm:] if ins.lgkm else []
        elif ins.is_vmem:
            self.vm.append(frozenset(ins.wr))
            while self.vm and not self.vm[0]: self.vm.pop(0)
        elif ins.is_ds:
            self.lg.append((frozenset(ins.wr), False))
            while self.lg and not self.lg[0][0]: self.lg.pop(0)
        elif ins.kind == 'smem':
            self.lg.append((frozenset(ins.wr), True))
        self.win = [(p, a + ins.nop) for p, a in self.win if a + ins.nop < WIN]
        if ins.kind in ('valu', 'trans', 'mfma', 'vstore') or (ins.kind == 'salu' and 'm0' in ins.wr):
            self.win.insert(0, (ins, 0))

def P(lines):
    out = []
    for l in lines:
        if isinstance(l, Ins): out.append(l)
        elif isinstance(l, (list, tuple)): out += P(l)
        else:
            for t in l.split('\n'):
                if t.strip(): out.append(Ins(t.strip()))
    return out

def auto(lines, st=None, look=0, minage=6):
    ins = P(lines)
    st = st.copy() if st else State()
    out = []
    issue_m = {}
    mcount = 0
    lg_issue = [(-99)] * len(st.lg)
    for idx, i in enumerate(ins):
        if i.kind in ('none', 'label'):
            out.append(i); continue
        vm, lg, nops = st.needs(i)
        if i.is_vmem and len(st.vm) >= 63: vm = 55 if vm is None else min(vm, 55)
        if lg is not None and look and not any(sm for _, sm in st.lg):
            seen = 0
            for j in ins[idx + 1:]:
                if j.kind in ('label', 'branch', 'cbranch', 'barrier'): break
                if j.kind == 'mfma':
                    seen += 1
                    if seen > look: break
                    for k, (d, sm) in enumerate(st.lg):
                        if d & j.rd and mcount - lg_issue[len(lg_issue) - len(st.lg) + k] >= minage:
                            lg = min(lg, len(st.lg) - 1 - k)
        if vm is not None or lg is not None:
            t = 's_waitcnt'
            if vm is not None: t += ' vmcnt(%d)' % min(vm, 63)
            if lg is not None: t += ' lgkmcnt(%d)' % min(lg, 15)
            w = Ins(t); out.append(w); st.step(w)
            vm, lg, nops = st.needs(i)
            assert vm is None and lg is None, (i.text, vm, lg)
        while nops > 0:
            k = min(nops, 16)
            w = Ins('s_nop %d' % (k - 1)); out.append(w); st.step(w); nops -= k
        out.append(i); st.step(i)
        if i.is_ds or i.kind == 'smem': lg_issue.append(mcount)
        if i.kind == 'mfma': mcount += 1
    return out, st

def check(ins, entry_labels, maxstates=400000):
    lab = {i.label: k for k, i in enumerate(ins) if i.kind == 'label'}
    errs = {}
    for e in entry_labels:
        seen = set()
        work = [(lab[e], State())]
        n = 0
        while work:
            pc, st = work.pop()
            while True:
                i = ins[pc]
                if i.kind == 'label':
                    k = (pc, st.key())
                    if k in seen: break
                    seen.add(k); n += 1
                    if n > maxstates: raise RuntimeError('too many states')
                elif i.kind != 'none':
                    vm, lg, nops = st.needs(i)
                    if vm is not None or lg is not None or nops:
                        errs.setdefault(pc, (i.text, vm, lg, nops))
                    st.step(i)
                    if len(st.vm) > 63: errs.setdefault(pc, (i.text, 'vm overflow', len(st.vm), 0))
                    if i.kind == 'end': break
                    if i.kind == 'branch':
                        pc = lab[i.target]; continue
                    if i.kind == 'cbranch':
                        work.append((lab[i.target], st.copy()))
                pc += 1
    return errs

def weave(mf, fill):
    n = len(mf)
    gaps = [[] for _ in range(n + 1)]
    for g, t in fill:
        g = max(-1, min(g, n - 1))
        gaps[g + 1].append(t)
    out = []
    out += gaps[0]
    for k in range(n):
        out.append(mf[k]); out += gaps[k + 1]
    return out

def vr(b, n=1, k='v'):
    return '%s%d' % (k, b) if n == 1 else '%s[%d:%d]' % (k, b, b + n - 1)
def ar(b, n=1): return vr(b, n, 'a')
def sr(b, n=1): return vr(b, n, 's')

def text_of(ins):
    out = []
    for i in ins:
        out.append(i.text if i.kind in ('label', 'none') else '    ' + i.text)
    return '\n'.join(out) + '\n'

def cost(item):
    c = 0
    for i in P([item]):
        if i.kind in ('none', 'label'): continue
        c += 2 if i.kind == 'trans' else 1
    return c

def sccgroup(items):
    flat = P(items)
    out = []; last = {}
    for i in flat:
        k = len(out)
        for r in ('scc',):
            if r in i.rd and r in last: k = min(k, last[r])
        if k < len(out):
            m = []
            for g in out[k:]: m += g
            out[k:] = [m + [i]]
        else:
            out.append([i])
        for r in ('scc',):
            if r in i.wr or r in i.rd: last[r] = len(out) - 1
    return out

def sched(mf, fixed, streams, cap=6):
    n = len(mf)
    gaps = [[] for _ in range(n + 1)]; load = [0] * (n + 1)
    for g, t in fixed:
        g = max(-1, min(g, n - 1))
        gaps[g + 1].append(t); load[g + 1] += cost(t)
    for st in streams:
        g = st['start']; used = 0
        for t in st['items']:
            c = cost(t)
            while g < n - 1 and ((load[g + 1] + c > cap and (load[g + 1] > cap - 2 or c <= cap - 2)) or used >= st.get('per', 99) or g in st.get('skip', ())):
                g += 1; used = 0
            gaps[g + 1].append(t); load[g + 1] += c; used += c
        st['last'] = g
        if st.get('end') is not None:
            assert g <= st['end'], ('stream overrun', st.get('name'), g, st['end'])
    out = list(gaps[0])
    for k in range(n):
        out.append(mf[k]); out += gaps[k + 1]
    return out
```
